```python
import torch

def _softmax(x, axis=-1):
    return torch.softmax(x, dim=axis)

def _gelu(x):
    return torch.nn.functional.gelu(x, approximate='tanh')

def _silu(x):
    return torch.nn.functional.silu(x)

def _sigmoid(x):
    return torch.sigmoid(x)

def _layernorm(x, axis=-1, eps=1e-05):
    m = x.mean(dim=axis, keepdim=True)
    v = x.var(dim=axis, keepdim=True, unbiased=False)
    return (x - m) / torch.sqrt(v + eps)

def _scatter_add(tgt, idx, src, axis=0):
    return tgt.clone().index_add_(axis, idx, src)

def _segment_sum(src, seg, n):
    out = torch.zeros((n,) + src.shape[1:], dtype=src.dtype)
    return out.index_add_(0, seg, src)

def _pad(x, pw):
    flat = tuple((v for pair in reversed(pw) for v in pair))
    return torch.nn.functional.pad(x, flat)
kernel_name = 'standalone__kv_cache_quant_pre_rope_vs_post_rope__prompt'

def setup_inputs():

    _w = lambda a: (lambda t: t.to(torch.bfloat16) if t.is_floating_point() else t)(torch.as_tensor(a))
    B, Sq, Skv = (1, 2048, 2048)
    H, Dh0 = (8, 128)
    G = 64 if 64 > 0 else Dh0
    G = max(2, G // 2 * 2)
    Dh = max(G, Dh0 // G * G)
    Skv = max(Skv, Sq)
    ng = Dh // G
    bits = 3 if 3 > 1 else 4
    bits = max(2, min(8, bits))
    qmax = (1 << bits) - 1
    half = Dh // 2
    inv = 1.0 / 10000.0 ** (torch.arange(half) / max(1, half))
    ang_k = torch.arange(Skv)[:, None] * inv[None, :]
    ang_q = torch.arange(Skv - Sq, Skv)[:, None] * inv[None, :]
    kc = torch.cat([torch.cos(ang_k), torch.cos(ang_k)], dim=-1)
    ks = torch.cat([torch.sin(ang_k), torch.sin(ang_k)], dim=-1)
    qc = torch.cat([torch.cos(ang_q), torch.cos(ang_q)], dim=-1)
    qs = torch.cat([torch.sin(ang_q), torch.sin(ang_q)], dim=-1)
    qk_i = torch.randint(0, qmax + 1, (B, H, Skv, Dh)).to(torch.int32)
    qv_i = torch.randint(0, qmax + 1, (B, H, Skv, Dh)).to(torch.int32)
    ksc = torch.abs((lambda *s: torch.randn(*s, dtype=torch.bfloat16) * 0.4)(B, H, Skv, ng)) * 0.1 + 0.01
    kzp = torch.full((B, H, Skv, ng), qmax / 2.0)
    vsc = torch.abs((lambda *s: torch.randn(*s, dtype=torch.bfloat16) * 0.4)(B, H, Skv, ng)) * 0.1 + 0.01
    vzp = torch.full((B, H, Skv, ng), qmax / 2.0)
    return {'q': _w((lambda *s: torch.randn(*s, dtype=torch.bfloat16) * 6.4)(B, H, Sq, Dh) * 0.5), 'qk': _w(qk_i), 'k_scales': _w(ksc), 'k_zeros': _w(kzp), 'qv': _w(qv_i), 'v_scales': _w(vsc), 'v_zeros': _w(vzp), 'q_cos': _w(qc), 'q_sin': _w(qs), 'k_cos': _w(kc), 'k_sin': _w(ks)}

def reference(q, qk, k_scales, k_zeros, qv, v_scales, v_zeros, q_cos, q_sin, k_cos, k_sin):
    B, H, Sq, Dh = q.shape
    ng = k_scales.shape[-1]
    G = Dh // ng
    half = Dh // 2
    ks = (lambda x, n, axis: torch.repeat_interleave(x, n, dim=axis))(k_scales, G, axis=-1)
    kz = (lambda x, n, axis: torch.repeat_interleave(x, n, dim=axis))(k_zeros, G, axis=-1)
    k = ((lambda x, dt: x.to(dt))(qk, q.dtype) - kz) * ks
    vs = (lambda x, n, axis: torch.repeat_interleave(x, n, dim=axis))(v_scales, G, axis=-1)
    vz = (lambda x, n, axis: torch.repeat_interleave(x, n, dim=axis))(v_zeros, G, axis=-1)
    v = ((lambda x, dt: x.to(dt))(qv, q.dtype) - vz) * vs
    k1 = k[..., :half].clone()
    k2 = k[..., half:].clone()
    krh = torch.concatenate([-k2, k1], axis=-1)
    kr = k * k_cos[None, None, :, :] + krh * k_sin[None, None, :, :]
    q1 = q[..., :half].clone()
    q2 = q[..., half:].clone()
    qrh = torch.concatenate([-q2, q1], axis=-1)
    qr = q * q_cos[None, None, :, :] + qrh * q_sin[None, None, :, :]
    logits = torch.einsum('bhqd,bhkd->bhqk', qr, kr) * float(Dh) ** (-0.5)
    attn = _softmax(logits, axis=-1)
    out = torch.einsum('bhqk,bhkd->bhqd', attn, v)
    return out
```

```python
import re

class Asm:
    def __init__(self):
        self.lines = []
    def I(self, *texts):
        for text in texts:
            for t in text.strip().split('\n'):
                t = t.strip()
                if not t: continue
                if t.endswith(':'):
                    self.lines.append(('l', t[:-1]))
                elif t.startswith(';'):
                    self.lines.append(('c', t))
                else:
                    self.lines.append(('i', t))
    def L(self, label): self.lines.append(('l', label))
    def C(self, c): self.lines.append(('c', '; ' + c))
    def raw(self, t): self.lines.append(('r', t))
    def extend(self, other): self.lines.extend(other.lines)
    def text(self):
        out = []
        for k, t in self.lines:
            if k == 'l': out.append(t + ':')
            elif k == 'i': out.append('    ' + t)
            elif k == 'c': out.append('    ' + t)
            else: out.append(t)
        return '\n'.join(out) + '\n'
    def instrs(self):
        return [t for k, t in self.lines if k == 'i']

REG = re.compile(r'^(-|\|)?(abs\()?([vas])(\d+)\)?\|?$')
RNG = re.compile(r'^(-)?([vas])\[(\d+):(\d+)\]$')

def regs_of(tok):
    tok = tok.strip()
    m = REG.match(tok)
    if m: return [(m.group(3), int(m.group(4)))]
    m = RNG.match(tok)
    if m: return [(m.group(2), i) for i in range(int(m.group(3)), int(m.group(4)) + 1)]
    if tok == 'vcc': return [('s', 'vcc')]
    if tok == 'exec': return [('s', 'exec')]
    if tok == 'm0': return [('s', 'm0')]
    if tok in ('vcc_lo', 'vcc_hi'): return [('s', 'vcc')]
    return []

TRANS = ('v_exp_f32', 'v_log_f32', 'v_rcp_f32', 'v_rsq_f32', 'v_sqrt_f32', 'v_sin_f32', 'v_cos_f32')

def parse(ins):
    ins = ins.split(';')[0].strip()
    parts = ins.split(None, 1)
    op = parts[0]
    ops = []
    if len(parts) > 1:
        ops = [x.strip() for x in parts[1].split(',')]
        last = ops[-1].split()
        ops[-1] = last[0] if last else ''
        mods = last[1:]
    else:
        mods = []
    base = re.sub(r'_(e32|e64|dpp|sdwa)$', '', op)
    d = dict(op=base, raw=ins, dst=[], src=[], kind='other', mods=mods, ops=ops)
    R = [regs_of(o) for o in ops]
    if base.startswith('v_mfma'):
        d['kind'] = 'mfma'; d['dst'] = R[0]; d['srcA'] = R[1]; d['srcB'] = R[2]; d['srcC'] = R[3]
        d['src'] = R[1] + R[2] + R[3]
        d['passes'] = 8 if '32x32' in base else 4
    elif base.startswith('v_cmp'):
        d['kind'] = 'valu'; d['dst'] = R[0]; d['src'] = sum(R[1:], [])
    elif base in ('v_readfirstlane_b32', 'v_readlane_b32'):
        d['kind'] = 'valu'; d['dst'] = R[0]; d['src'] = sum(R[1:], []); d['readlane'] = True
    elif base.startswith('v_permlane32_swap') or base.startswith('v_permlane16_swap'):
        d['kind'] = 'valu'; d['dst'] = R[0] + R[1]; d['src'] = R[0] + R[1]; d['permlane'] = True
    elif base.startswith('v_'):
        d['kind'] = 'valu'
        if base in ('v_add_co_u32', 'v_sub_co_u32', 'v_addc_co_u32', 'v_subb_co_u32', 'v_div_scale_f32', 'v_mad_u64_u32'):
            d['dst'] = R[0] + R[1]; d['src'] = sum(R[2:], [])
        else:
            d['dst'] = R[0]; d['src'] = sum(R[1:], [])
        if base in ('v_fmac_f32', 'v_dot2c_f32_bf16', 'v_writelane_b32'): d['src'] = d['src'] + R[0]
        if base == 'v_cndmask_b32' and len(ops) == 3: d['src'] = d['src'] + [('s', 'vcc')]
        if op.endswith('_dpp') or any(m.startswith(('row_', 'quad_perm', 'wave_')) for m in mods): d['dpp'] = True
        if base in TRANS: d['trans'] = True
    elif base.startswith(('global_load', 'buffer_load', 'flat_load')):
        d['kind'] = 'vmem'
        if 'lds' in mods or '_lds_' in base:
            d['src'] = sum(R, []) + [('s', 'm0')]; d['ldsdma'] = True
        else:
            d['dst'] = R[0]; d['src'] = sum(R[1:], [])
    elif base.startswith(('global_store', 'buffer_store')):
        d['kind'] = 'vmem'; d['src'] = sum(R, [])
        d['store'] = True
        d['data'] = R[1] if base.startswith('global') else R[0]
        d['wide'] = base.endswith(('x3', 'x4'))
    elif base.startswith(('global_atomic', 'buffer_atomic')):
        d['kind'] = 'vmem'
        if 'sc0' in mods and base.startswith('global'):
            d['dst'] = R[0]; d['src'] = sum(R[1:], [])
        else:
            d['src'] = sum(R, [])
    elif base.startswith('ds_'):
        d['kind'] = 'ds'
        if base.startswith(('ds_read', 'ds_bpermute', 'ds_permute', 'ds_swizzle')):
            d['dst'] = R[0]; d['src'] = sum(R[1:], [])
        else:
            d['src'] = sum(R, [])
    elif base.startswith('s_'):
        d['kind'] = 'salu'
        if base.startswith(('s_cmp', 's_cbranch', 's_branch', 's_waitcnt', 's_barrier', 's_nop', 's_endpgm', 's_sleep', 's_setprio', 's_bitcmp')):
            d['src'] = sum(R, [])
        else:
            d['dst'] = R[0] if R else []; d['src'] = sum(R[1:], [])
            if 'saveexec' in base: d['dst'] = d['dst'] + [('s', 'exec')]
        if base == 's_nop': d['nop'] = int(ops[0], 0) + 1
    elif base in ('buffer_inv', 'buffer_wbl2'):
        d['kind'] = 'vmem'
    return d

def check_hazards(instrs, name=''):
    P = [parse(i) for i in instrs]
    probs = []
    n = len(P)
    def dist(i, j):
        s = 0
        for k in range(i + 1, j):
            s += P[k].get('nop', 1)
        return s
    W = 24
    for j in range(n):
        c = P[j]
        cs, cd = set(c['src']), set(c['dst'])
        st = 0
        for i in range(j - 1, max(-1, j - W - 1), -1):
            p = P[i]
            pd, ps = set(p['dst']), set(p['src'])
            need = 0; why = ''
            def req(n_, w):
                nonlocal need, why
                if n_ > need: need, why = n_, w
            if p['kind'] == 'mfma':
                pas = p['passes']
                rw = {2: 5, 4: 8, 8: 12, 16: 20}[pas]
                if c['kind'] == 'mfma':
                    if pd & (set(c['srcA']) | set(c['srcB'])): req(rw, 'mfma D -> mfma A/B')
                    if pd & set(c['srcC']):
                        if p['dst'] == c['srcC'] and pas == c['passes']: pass
                        else: req({2: 4, 4: 6, 8: 10, 16: 18}[pas], 'mfma D -> mfma C partial')
                    if pd & cd and not (p['dst'] == c['dst']): req(rw, 'mfma D WAW mfma')
                elif c['kind'] in ('valu',):
                    if pd & (cs | cd): req(rw, 'mfma D -> valu')
                    if set(p['srcC']) & cd: req({2: 1, 4: 3, 8: 7, 16: 15}[pas], 'mfma C read -> valu write')
                elif c['kind'] in ('vmem', 'ds'):
                    if pd & (cs | cd): req(rw, 'mfma D -> vmem/ds')
            if p['kind'] == 'valu':
                vd = set(r for r in pd if r[0] in 'va')
                sd = set(r for r in pd if r[0] == 's')
                if c['kind'] == 'mfma' and vd & cs: req(2, 'valu -> mfma')
                if c['kind'] == 'valu':
                    if p.get('trans') and vd & cs: req(1, 'trans -> valu')
                    if c.get('readlane') and vd & cs: req(1, 'valu -> readlane')
                    if c.get('permlane') and vd & cs: req(2, 'valu -> permlane')
                    if c.get('dpp') and vd & cs: req(2, 'valu -> dpp')
                    if sd & cs: req(2, 'valu sgpr -> valu read')
                    if c.get('readlane') and sd & cs: req(4, 'valu sgpr -> lane select')
                    if ('s', 'exec') in sd and c.get('dpp'): req(5, 'exec -> dpp')
                if c['kind'] == 'vmem' and sd & cs: req(5, 'valu sgpr -> vmem')
                if c['kind'] == 'mfma' and ('s', 'exec') in sd: req(4, 'valu exec -> mfma')
                if c['kind'] == 'salu' and sd & cs: req(1, 'valu sgpr -> salu (pad)')
                if p.get('trans') and c['kind'] in ('vmem', 'ds') and vd & cs: req(1, 'trans -> mem')
            if p.get('store') and p.get('wide'):
                if set(p['data']) & cd:
                    req(2 if c['kind'] == 'valu' else 1, 'wide store data WAR')
            if p['kind'] == 'salu' and ('s', 'm0') in pd and c.get('ldsdma'): req(1, 'm0 -> ldsdma')
            if need > st:
                probs.append('%s: [%d] %s  -> [%d] %s : need %d have %d (%s)' % (name, i, p['raw'], j, c['raw'], need, st, why))
            st += p.get('nop', 1)
            if st >= 21: break
    return probs
```

```python
import sys
from asmlib import *

KN = 'standalone__kv_cache_quant_pre_rope_vs_post_rope__prompt'
S_Q, S_QK, S_KS, S_KZ, S_QV, S_VS, S_VZ, S_QCOS, S_QSIN, S_KCOS, S_KSIN, S_OUT, S_DBG, S_WS = 16,18,20,22,24,26,28,30,32,34,36,38,40,42
def sp(n): return f's[{n}:{n+1}]'
CSCALE = 0.08838834764831845 * 1.4426950408889634
import struct
def f2u(f): return struct.unpack('<I', struct.pack('<f', f))[0]

def common_prologue(a, endlabel):
    a.I(f'''
    s_cmp_ge_u32 s2, 256
    s_cbranch_scc1 {endlabel}
    s_load_dwordx16 s[16:31], s[0:1], 0
    s_load_dwordx8 s[32:39], s[0:1], 64
    s_load_dwordx4 s[40:43], s[0:1], 96
    s_and_b32 s4, s2, 7          ; head
    s_lshr_b32 s5, s2, 3
    v_lshrrev_b32 v1, 6, v0
    v_and_b32 v0, 63, v0         ; lane
    v_readfirstlane_b32 s6, v1
    s_mov_b32 s7, 0xffff0000
    ''')

def round_pair(a, x0, x1, tmp):
    a.I(f'v_cvt_pk_bf16_f32 v{tmp}, v{x0}, v{x1}')
    a.I(f'v_lshlrev_b32 v{x0}, 16, v{tmp}')
    a.I(f'v_and_b32 v{x1}, s7, v{tmp}')

def unpack8(a, src4, dst8):
    for i in range(4):
        a.I(f'v_lshlrev_b32 v{dst8+2*i}, 16, v{src4+i}')
        a.I(f'v_and_b32 v{dst8+2*i+1}, s7, v{src4+i}')

def rope8(a, k1, k2, CX, CY, SX, SY, t, outp, post_scale=None):
    c = t; p1 = t + 8; p2 = t + 16; tmp = t + 24
    o1 = t + 25
    unpack8(a, CX, c)
    for i in range(8): a.I(f'v_mul_f32 v{p1+i}, v{k1+i}, v{c+i}')
    unpack8(a, SX, c)
    for i in range(8): a.I(f'v_mul_f32 v{p2+i}, v{k2+i}, v{c+i}')
    for i in range(0, 8, 2):
        round_pair(a, p1+i, p1+i+1, tmp)
        round_pair(a, p2+i, p2+i+1, tmp)
    for i in range(8): a.I(f'v_sub_f32 v{o1+i}, v{p1+i}, v{p2+i}')
    unpack8(a, CY, c)
    for i in range(8): a.I(f'v_mul_f32 v{p1+i}, v{k2+i}, v{c+i}')
    unpack8(a, SY, c)
    for i in range(8): a.I(f'v_mul_f32 v{p2+i}, v{k1+i}, v{c+i}')
    for i in range(0, 8, 2):
        round_pair(a, p1+i, p1+i+1, tmp)
        round_pair(a, p2+i, p2+i+1, tmp)
    o2 = c
    for i in range(8): a.I(f'v_add_f32 v{o2+i}, v{p1+i}, v{p2+i}')
    if post_scale is not None:
        for o in (o1, o2):
            for i in range(0, 8, 2): round_pair(a, o+i, o+i+1, tmp)
            for i in range(8): a.I(f'v_mul_f32 v{o+i}, {post_scale}, v{o+i}')
    a.I(f'v_cvt_pk_bf16_f32 v{outp+0}, v{o1+0}, v{o1+1}')
    a.I(f'v_cvt_pk_bf16_f32 v{outp+1}, v{o1+2}, v{o1+3}')
    a.I(f'v_cvt_pk_bf16_f32 v{outp+2}, v{o2+0}, v{o2+1}')
    a.I(f'v_cvt_pk_bf16_f32 v{outp+3}, v{o2+2}, v{o2+3}')
    a.I(f'v_cvt_pk_bf16_f32 v{outp+4}, v{o1+4}, v{o1+5}')
    a.I(f'v_cvt_pk_bf16_f32 v{outp+5}, v{o1+6}, v{o1+7}')
    a.I(f'v_cvt_pk_bf16_f32 v{outp+6}, v{o2+4}, v{o2+5}')
    a.I(f'v_cvt_pk_bf16_f32 v{outp+7}, v{o2+6}, v{o2+7}')

def gen_prep():
    a = Asm()
    common_prologue(a, 'P_end')
    a.I('''
    s_lshl_b32 s8, s5, 6
    s_lshl_b32 s9, s6, 4
    s_add_u32 s8, s8, s9          ; k0
    s_lshl_b32 s10, s4, 11        ; h*2048
    s_add_u32 s10, s10, s8
    v_lshrrev_b32 v2, 3, v0       ; r
    v_and_b32 v3, 7, v0           ; u
    v_add_u32 v4, s10, v2
    v_lshlrev_b32 v6, 2, v4
    v_lshlrev_b32 v4, 9, v4
    v_lshl_add_u32 v4, v3, 5, v4
    v_add_u32 v5, 4096, v4        ; su=1
    v_add_u32 v7, s8, v2
    v_lshlrev_b32 v7, 8, v7
    v_lshl_add_u32 v7, v3, 4, v7
    v_and_b32 v8, 31, v0
    v_lshrrev_b32 v9, 5, v0       ; hh
    v_and_b32 v10, 0x13, v8
    v_and_b32 v11, 4, v8
    v_lshlrev_b32 v11, 1, v11
    v_or_b32 v10, v10, v11
    v_and_b32 v11, 8, v8
    v_lshrrev_b32 v11, 1, v11
    v_or_b32 v10, v10, v11        ; c
    v_lshlrev_b32 v11, 2, v9
    v_add_u32 v11, s10, v11       ; row+4hh
    v_lshlrev_b32 v13, 2, v11
    v_lshlrev_b32 v12, 9, v11
    v_lshl_add_u32 v12, v10, 4, v12
    v_add_u32 v14, 4096, v12
    v_lshrrev_b32 v15, 4, v10
    v_lshlrev_b32 v15, 4, v15
    v_sub_u32 v15, 16, v15        ; 16 - 16*g
    s_waitcnt lgkmcnt(0)
    ''')
    KB = [32, 32 + 34]
    VB = 100
    for su in range(2):
        b = KB[su]; vo = 4 + su
        a.I(f'global_load_dwordx4 v[{b}:{b+3}], v{vo}, {sp(S_QK)}')
        a.I(f'global_load_dwordx4 v[{b+4}:{b+7}], v{vo}, {sp(S_QK)} offset:16')
        a.I(f'global_load_dwordx4 v[{b+8}:{b+11}], v{vo}, {sp(S_QK)} offset:256')
        a.I(f'global_load_dwordx4 v[{b+12}:{b+15}], v{vo}, {sp(S_QK)} offset:272')
    for sl in range(8):
        vo = 12 if sl < 4 else 14
        a.I(f'global_load_dwordx4 v[{VB+4*sl}:{VB+4*sl+3}], v{vo}, {sp(S_QV)} offset:{(sl%4)*512}')
    for su in range(2):
        b = KB[su]
        a.I(f'global_load_dwordx4 v[{b+16}:{b+19}], v7, {sp(S_KCOS)} offset:{su*2048}')
        a.I(f'global_load_dwordx4 v[{b+20}:{b+23}], v7, {sp(S_KCOS)} offset:{su*2048+128}')
        a.I(f'global_load_dwordx4 v[{b+24}:{b+27}], v7, {sp(S_KSIN)} offset:{su*2048}')
        a.I(f'global_load_dwordx4 v[{b+28}:{b+31}], v7, {sp(S_KSIN)} offset:{su*2048+128}')
        a.I(f'global_load_dword v{b+32}, v6, {sp(S_KS)} offset:{su*32}')
        a.I(f'global_load_dword v{b+33}, v6, {sp(S_KZ)} offset:{su*32}')
    a.I(f'global_load_dwordx4 v[{VB+32}:{VB+35}], v13, {sp(S_VS)}')
    a.I(f'global_load_dwordx4 v[{VB+36}:{VB+39}], v13, {sp(S_VS)} offset:32')
    a.I(f'global_load_dwordx4 v[{VB+40}:{VB+43}], v13, {sp(S_VZ)}')
    a.I(f'global_load_dwordx4 v[{VB+44}:{VB+47}], v13, {sp(S_VZ)} offset:32')
    a.I('''
    s_lshr_b32 s11, s8, 5
    s_lshl_b32 s11, s11, 14
    s_lshl_b32 s12, s4, 20
    s_add_u32 s11, s11, s12
    s_add_u32 s44, s42, s11
    s_addc_u32 s45, s43, 0
    ; K store voffset: u*1024 + ((k0%32) + r)*16   (+8*16 for su=1, +512 for piece 1)
    s_and_b32 s13, s8, 31
    v_add_u32 v16, s13, v2
    v_lshlrev_b32 v16, 4, v16
    v_lshl_add_u32 v16, v3, 10, v16
    s_lshr_b32 s13, s8, 4
    s_and_b32 s13, s13, 1
    s_lshl_b32 s13, s13, 12
    s_add_u32 s13, s13, 8192
    v_lshlrev_b32 v17, 4, v0
    v_add_u32 v17, s13, v17
    s_waitcnt vmcnt(0)
    ''')
    T = 160
    for su in range(2):
        b = KB[su]
        X, Y, CX, CY, SX, SY, KS, KZ = b, b+8, b+16, b+20, b+24, b+28, b+32, b+33
        s0, s1, n0, n1 = 18, 19, 20, 21
        a.I(f'v_lshlrev_b32 v{s0}, 16, v{KS}')
        a.I(f'v_and_b32 v{s1}, s7, v{KS}')
        a.I(f'v_lshlrev_b32 v{n0}, 16, v{KZ}')
        a.I(f'v_and_b32 v{n1}, s7, v{KZ}')
        a.I(f'v_mul_f32 v{n0}, v{n0}, v{s0}')
        a.I(f'v_mul_f32 v{n1}, v{n1}, v{s1}')
        for i in range(8):
            a.I(f'v_cvt_f32_i32 v{X+i}, v{X+i}')
            a.I(f'v_cvt_f32_i32 v{Y+i}, v{Y+i}')
        for i in range(8):
            a.I(f'v_fma_f32 v{X+i}, v{X+i}, v{s0}, -v{n0}')
            a.I(f'v_fma_f32 v{Y+i}, v{Y+i}, v{s1}, -v{n1}')
        for i in range(0, 8, 2):
            round_pair(a, X+i, X+i+1, 22)
            round_pair(a, Y+i, Y+i+1, 22)
        outp = 24
        rope8(a, X, Y, CX, CY, SX, SY, T, outp)
        a.I(f'global_store_dwordx4 v16, v[{outp}:{outp+3}], s[44:45] offset:{su*128}')
        a.I(f'global_store_dwordx4 v16, v[{outp+4}:{outp+7}], s[44:45] offset:{su*128+512}')
        a.I('s_nop 1')
    for sl in range(8):
        vs = VB + 32 + (sl // 4) * 4 + sl % 4
        vz = VB + 40 + (sl // 4) * 4 + sl % 4
        a.I(f'v_lshlrev_b32 v{vs}, v15, v{vs}')
        a.I(f'v_lshlrev_b32 v{vz}, v15, v{vz}')
        a.I(f'v_and_b32 v{vs}, s7, v{vs}')
        a.I(f'v_and_b32 v{vz}, s7, v{vz}')
        a.I(f'v_mul_f32 v{vz}, v{vz}, v{vs}')
        for dd in range(4):
            a.I(f'v_cvt_f32_i32 v{VB+4*sl+dd}, v{VB+4*sl+dd}')
        for dd in range(4):
            a.I(f'v_fma_f32 v{VB+4*sl+dd}, v{VB+4*sl+dd}, v{vs}, -v{vz}')
    for dd in range(4):
        o = T + 4 * dd
        for k in range(4):
            a.I(f'v_cvt_pk_bf16_f32 v{o+k}, v{VB+4*(2*k)+dd}, v{VB+4*(2*k+1)+dd}')
        a.I(f'global_store_dwordx4 v17, v[{o}:{o+3}], s[44:45] offset:{dd*1024}')
    a.L('P_end')
    a.I('s_endpgm')
    return a

A_O = 0; A_Q = 128; A_K = [192, 224]
V_S = [32, 48]; V_P = [64, 72]; V_L = [80, 81]; V_V = [128, 160]
VO = [4, 5, 6, 7]
LDS_X = 0
LDS_L = 131072
LDS_Q = 131072 + 2048
LDS_TOTAL = LDS_Q + 16 * 1040

def qk_mfma(qb, s, kbuf):
    S = V_S[qb]; K = A_K[kbuf] + 4 * s; Q = A_Q + (qb * 8 + s) * 4
    c = '0' if s == 0 else f'v[{S}:{S+15}]'
    return f'v_mfma_f32_32x32x16_bf16 v[{S}:{S+15}], a[{K}:{K+3}], a[{Q}:{Q+3}], {c}'
def pv_mfma(qb, m, vbuf):
    t, j = m // 4, m % 4
    O = A_O + (qb * 4 + j) * 16; V = V_V[vbuf] + 4 * m; P = V_P[qb] + 4 * t
    return f'v_mfma_f32_32x32x16_bf16 a[{O}:{O+15}], v[{V}:{V+3}], v[{P}:{P+3}], a[{O}:{O+15}]'
def stream_pos(qb, n):
    S = V_S[qb]; P = V_P[qb]; L = V_L[qb]
    r = []
    if n <= 15: r.append(f'v_exp_f32 v{S+n}, v{S+n}')
    if 1 <= n <= 16: r.append(f'v_add_f32 v{L}, v{L}, v{S+n-1}')
    if n >= 2 and n % 2 == 0 and n <= 16: r.append(f'v_cvt_pk_bf16_f32 v{P+(n-2)//2}, v{S+n-2}, v{S+n-1}')
    return r
def kload(f, kbuf):
    r = A_K[kbuf] + 4 * f
    return f'buffer_load_dwordx4 a[{r}:{r+3}], v{VO[f//4]}, s[48:51], s52 offen offset:{(f%4)*1024}'
def vload(f, vbuf):
    r = V_V[vbuf] + 4 * f
    return f'buffer_load_dwordx4 v[{r}:{r+3}], v{VO[2+f//4]}, s[48:51], s53 offen offset:{(f%4)*1024}'

A_START = 10
B_START = 26

def step(a, par, last=False):
    kb = 1 - par; vb = par
    for g in range(32):
        grp = g // 8; m = g % 8
        if g == 0 and not last: a.I('s_waitcnt vmcnt(16)')
        if g == 8: a.I('s_waitcnt vmcnt(16)' if not last else 's_waitcnt vmcnt(0)')
        if grp == 0:
            if not last: a.I(qk_mfma(0, m, kb))
        elif grp == 1: a.I(pv_mfma(0, m, vb))
        elif grp == 2:
            if not last: a.I(qk_mfma(1, m, kb))
        else: a.I(pv_mfma(1, m, vb))
        if g <= 10:
            for t in stream_pos(1, g + 32 - B_START): a.I(t)
        if not last:
            if A_START <= g <= A_START + 16:
                for t in stream_pos(0, g - A_START): a.I(t)
            if g >= B_START:
                for t in stream_pos(1, g - B_START): a.I(t)
            if grp == 0: a.I(vload(m, 1 - par))
            if grp == 3: a.I(kload(m, kb))
            if g == 7: a.I('s_add_u32 s53, s53, 16384')
            if g == 31: a.I('s_add_u32 s52, s52, 16384')
        if last and g == 10:
            a.I('s_nop 1')

def gen_main():
    a = Asm()
    common_prologue(a, 'M_end')
    a.I(f'''
    s_lshl_b32 s8, s5, 6           ; q0 = 64*tile
    v_lshrrev_b32 v2, 3, v0        ; r
    v_and_b32 v3, 7, v0            ; u
    s_lshl_b32 s9, s6, 4           ; 16*w
    s_add_u32 s9, s9, s8           ; q0+16w
    s_lshl_b32 s10, s4, 11
    s_add_u32 s10, s10, s9
    v_add_u32 v8, s10, v2
    v_lshlrev_b32 v8, 8, v8
    v_lshl_add_u32 v8, v3, 4, v8   ; q offset
    v_add_u32 v9, s9, v2
    v_lshlrev_b32 v9, 8, v9
    v_lshl_add_u32 v9, v3, 4, v9
    v_lshlrev_b32 v4, 4, v0        ; lane*16
    v_add_u32 v5, 4096, v4
    v_add_u32 v6, 8192, v4
    v_add_u32 v7, 12288, v4
    s_lshl_b32 s11, s4, 20
    s_lshl_b32 s12, s6, 18
    s_add_u32 s11, s11, s12
    s_waitcnt lgkmcnt(0)
    s_add_u32 s48, s42, s11
    s_addc_u32 s49, s43, 0
    s_mov_b32 s50, 0x40000
    s_mov_b32 s51, 0x20000
    ''')
    QB = [84, 32]
    for su in range(2):
        b = QB[su]
        a.I(f'global_load_dwordx4 v[{b}:{b+3}], v8, {sp(S_Q)} offset:{su*2048}')
        a.I(f'global_load_dwordx4 v[{b+4}:{b+7}], v8, {sp(S_Q)} offset:{su*2048+128}')
        a.I(f'global_load_dwordx4 v[{b+8}:{b+11}], v9, {sp(S_QCOS)} offset:{su*2048}')
        a.I(f'global_load_dwordx4 v[{b+12}:{b+15}], v9, {sp(S_QCOS)} offset:{su*2048+128}')
        a.I(f'global_load_dwordx4 v[{b+16}:{b+19}], v9, {sp(S_QSIN)} offset:{su*2048}')
        a.I(f'global_load_dwordx4 v[{b+20}:{b+23}], v9, {sp(S_QSIN)} offset:{su*2048+128}')
    a.I('s_mov_b32 s52, 0')
    for f in range(8): a.I(kload(f, 0))
    a.I('s_mov_b32 s52, 16384')
    for f in range(8): a.I(kload(f, 1))
    a.I('s_mov_b32 s53, 0')
    for f in range(8): a.I(vload(f, 0))
    a.I('s_mov_b32 s52, 32768')
    a.I('s_mov_b32 s53, 16384')
    for i in range(128): a.I(f'v_accvgpr_write_b32 a{i}, 0')
    a.I('v_mov_b32 v80, 0'); a.I('v_mov_b32 v81, 0')
    a.I(f'''
    s_lshr_b32 s13, s6, 1          ; qb
    s_lshl_b32 s13, s13, 3
    v_add_u32 v10, s13, v3         ; qb*8+u
    v_mul_u32_u24 v10, 1040, v10
    s_and_b32 s13, s6, 1
    s_lshl_b32 s13, s13, 4         ; (w&1)*16
    v_add_u32 v11, s13, v2
    v_lshl_add_u32 v10, v11, 4, v10
    v_add_u32 v10, {LDS_Q}, v10
    s_mov_b32 s14, {hex(f2u(CSCALE))}
    s_waitcnt vmcnt(24)
    ''')
    T = 192
    for su in range(2):
        b = QB[su]
        k1, k2 = 12, 20
        unpack8(a, b, k1); unpack8(a, b + 4, k2)
        outp = 232
        rope8(a, k1, k2, b+8, b+12, b+16, b+20, T, outp, post_scale='s14')
        a.I(f'ds_write_b128 v10, v[{outp}:{outp+3}] offset:{su*128}')
        a.I(f'ds_write_b128 v10, v[{outp+4}:{outp+7}] offset:{su*128+512}')
        a.I('s_nop 1')
    a.I('s_waitcnt lgkmcnt(0)')
    a.I('s_barrier')
    a.I(f'v_add_u32 v10, {LDS_Q}, v4')
    for f in range(16):
        a.I(f'ds_read_b128 a[{A_Q+4*f}:{A_Q+4*f+3}], v10 offset:{f*1040}')
    a.I('s_waitcnt lgkmcnt(0)')
    a.I('s_waitcnt vmcnt(16)')
    for m in range(8): a.I(qk_mfma(0, m, 0))
    for m in range(8):
        a.I(qk_mfma(1, m, 0))
        a.I(kload(m, 0))
    a.I('s_add_u32 s52, s52, 16384')
    for n in range(0, 17):
        for t in stream_pos(0, n): a.I(t)
        if n == 0: a.I('s_nop 0')
    for n in range(0, 6):
        for t in stream_pos(1, n): a.I(t)
        a.I('s_nop 0')
    a.I('s_mov_b32 s54, 0')
    a.I('s_branch M_entry')
    loop = Asm()
    loop.L('M_loop')
    step(loop, 1)
    loop.L('M_entry')
    step(loop, 0)
    loop.I('s_add_u32 s54, s54, 1')
    loop.I('s_cmp_lt_u32 s54, 8')
    loop.I('s_cbranch_scc1 M_loop')
    a.extend(loop)
    fin = Asm()
    step(fin, 1, last=True)
    a.extend(fin)
    chk = loop.instrs() + loop.instrs() + fin.instrs()
    pr = check_hazards(chk, 'loop')
    for p in pr: print('HAZ', p)
    a.I('''
    s_nop 7
    v_mov_b32 v82, v80
    v_mov_b32 v83, v81
    s_nop 1
    v_permlane32_swap_b32 v80, v82
    v_permlane32_swap_b32 v81, v83
    v_add_f32 v80, v80, v82
    v_add_f32 v81, v81, v83
    s_lshl_b32 s13, s6, 9
    v_lshlrev_b32 v10, 2, v0
    v_add_u32 v11, s13, v10
    ''')
    a.I(f'v_add_u32 v11, {LDS_L}, v11')
    a.I('ds_write_b32 v11, v80')
    a.I('ds_write_b32 v11, v81 offset:256')
    a.I('''
    s_lshl_b32 s13, s6, 13
    v_add_u32 v12, s13, v4
    v_add_u32 v13, 0x10000, v12
    s_nop 7
    ''')
    OWN = 84
    for w in range(4):
        qb, ap = w & 1, w >> 1
        a.I(f's_cmp_eq_u32 s6, {w}')
        a.I(f's_cbranch_scc1 M_own{w}')
        for j in range(4):
            for half in range(2):
                r = A_O + (qb * 4 + j) * 16 + 8 * ap + 4 * half
                k = j * 2 + half
                va = 12 if w < 2 else 13
                a.I(f'ds_write_b128 v{va}, a[{r}:{r+3}] offset:{(w%2)*32768 + k*1024}')
        a.I(f's_branch M_next{w}')
        a.L(f'M_own{w}')
        for j in range(4):
            for half in range(2):
                for e in range(4):
                    r = A_O + (qb * 4 + j) * 16 + 8 * ap + 4 * half + e
                    a.I(f'v_accvgpr_read_b32 v{OWN+(j*2+half)*4+e}, a{r}')
        a.L(f'M_next{w}')
    a.I('s_waitcnt lgkmcnt(0)')
    a.I('s_barrier')
    RB = 128
    a.I('s_lshl_b32 s13, s6, 15')
    for k in range(1, 4):
        a.I(f's_add_u32 s14, s6, {k}')
        a.I('s_and_b32 s14, s14, 3')
        a.I('s_lshl_b32 s14, s14, 13')
        a.I('s_add_u32 s14, s14, s13')
        a.I(f'v_add_u32 v{12+k}, s14, v4')
    for k in range(1, 4):
        for i in range(8):
            r = RB + (k - 1) * 32 + 4 * i
            a.I(f'ds_read_b128 v[{r}:{r+3}], v{12+k} offset:{i*1024}')
    a.I(f'''
    s_and_b32 s13, s6, 1
    s_lshl_b32 s13, s13, 8
    s_add_u32 s13, s13, {LDS_L}
    v_add_u32 v11, s13, v10
    ds_read_b32 v16, v11
    ds_read_b32 v17, v11 offset:512
    ds_read_b32 v18, v11 offset:1024
    ds_read_b32 v19, v11 offset:1536
    s_waitcnt lgkmcnt(0)
    v_add_f32 v16, v16, v17
    v_add_f32 v18, v18, v19
    v_add_f32 v16, v16, v18
    v_rcp_f32 v16, v16
    ''')
    for i in range(32):
        a.I(f'v_add_f32 v{OWN+i}, v{OWN+i}, v{RB+i}')
        a.I(f'v_add_f32 v{RB+32+i}, v{RB+32+i}, v{RB+64+i}')
    for i in range(32):
        a.I(f'v_add_f32 v{OWN+i}, v{OWN+i}, v{RB+32+i}')
    for i in range(32):
        a.I(f'v_mul_f32 v{OWN+i}, v{OWN+i}, v16')
    D = 128
    def own(j, half, e): return OWN + (j * 2 + half) * 4 + e
    for half in range(2):
        for e in range(4):
            a.I(f'v_cvt_pk_bf16_f32 v{D+half*8+e*2}, v{own(0,half,e)}, v{own(1,half,e)}')
            a.I(f'v_cvt_pk_bf16_f32 v{D+half*8+e*2+1}, v{own(2,half,e)}, v{own(3,half,e)}')
    a.I('''
    s_mul_i32 s13, s6, 40960
    v_and_b32 v12, 31, v0
    v_lshrrev_b32 v13, 5, v0
    v_mul_u32_u24 v12, 144, v12
    v_lshl_add_u32 v12, v13, 6, v12
    v_add_u32 v12, s13, v12
    v_mul_u32_u24 v13, 144, v2     ; r*144
    v_lshl_add_u32 v13, v3, 4, v13
    v_add_u32 v13, s13, v13
    ''')
    for k in range(4):
        a.I(f'ds_write_b128 v12, v[{D+4*k}:{D+4*k+3}] offset:{k*16}')
    for i in range(4):
        a.I(f'ds_read_b128 v[{D+16+4*i}:{D+16+4*i+3}], v13 offset:{i*8*144}')
    a.I(f'''
    s_lshl_b32 s13, s4, 11
    s_add_u32 s13, s13, s8
    s_and_b32 s14, s6, 1
    s_lshl_b32 s14, s14, 5
    s_add_u32 s13, s13, s14
    s_lshl_b32 s13, s13, 8
    s_lshr_b32 s14, s6, 1
    s_lshl_b32 s14, s14, 7
    s_add_u32 s13, s13, s14
    v_lshlrev_b32 v14, 8, v2
    v_lshl_add_u32 v14, v3, 4, v14
    v_add_u32 v14, s13, v14
    v_add_u32 v15, 4096, v14
    s_waitcnt lgkmcnt(0)
    ''')
    for i in range(4):
        vo = 14 if i < 2 else 15
        a.I(f'global_store_dwordx4 v{vo}, v[{D+16+4*i}:{D+16+4*i+3}], {sp(S_OUT)} offset:{(i%2)*2048}')
    a.L('M_end')
    a.I('s_endpgm')
    return a

def kdesc(name, vgpr, accum):
    return f'''.section .rodata,"a"
.p2align 6
.amdhsa_kernel {name}
  .amdhsa_next_free_vgpr {vgpr}
  .amdhsa_next_free_sgpr 96
  .amdhsa_accum_offset {accum}
  .amdhsa_group_segment_fixed_size 0
  .amdhsa_kernarg_size 112
  .amdhsa_user_sgpr_count 2
  .amdhsa_user_sgpr_kernarg_segment_ptr 1
  .amdhsa_system_sgpr_workgroup_id_x 1
.end_amdhsa_kernel
.text
'''
def kstart(name):
    return f'.globl {name}\n.p2align 8\n.type {name},@function\n{name}:\n'

if __name__ == '__main__':
    prep = gen_prep(); main = gen_main()
    for nm, k in (('prep', prep), ('main', main)):
        for p in check_hazards(k.instrs(), nm): print('HAZ', p)
    s = f'; @launch kernel=prep_kernel grid=(256,1,1) block=(256,1,1) lds=0\n'
    s += f'; @launch kernel=attn_kernel grid=(256,1,1) block=(256,1,1) lds={LDS_TOTAL}\n'
    s += '.amdgcn_target "amdgcn-amd-amdhsa--gfx950"\n.text\n'
    s += kstart('prep_kernel') + prep.text()
    s += kstart('attn_kernel') + main.text()
    s += kdesc('prep_kernel', 256, 256) + kdesc('attn_kernel', 512, 256)
    open(sys.argv[1] if len(sys.argv) > 1 else 'v1.s', 'w').write(s)
    print('LDS', LDS_TOTAL)
```
